```python
import torch

def _softmax(x, axis=-1):
    return torch.softmax(x, dim=axis)
def _gelu(x):
    return torch.nn.functional.gelu(x, approximate="tanh")
def _silu(x):
    return torch.nn.functional.silu(x)
def _sigmoid(x):
    return torch.sigmoid(x)
def _layernorm(x, axis=-1, eps=1e-5):
    m = x.mean(dim=axis, keepdim=True)
    v = x.var(dim=axis, keepdim=True, unbiased=False)
    return (x - m) / torch.sqrt(v + eps)
def _scatter_add(tgt, idx, src, axis=0):
    return tgt.clone().index_add_(axis, idx, src)
def _segment_sum(src, seg, n):
    out = torch.zeros((n,) + src.shape[1:], dtype=src.dtype)
    return out.index_add_(0, seg, src)
def _pad(x, pw):
    flat = tuple(v for pair in reversed(pw) for v in pair)
    return torch.nn.functional.pad(x, flat)

kernel_name = 'gather_scatter__edge_featured_mpnn_gatedgcn__graph'

def setup_inputs():

    _w = (lambda a: (lambda t: t.to(torch.bfloat16) if t.is_floating_point() else t)(torch.as_tensor(a)))
    N, deg, D, De = 10000, 64, 64, max(16, 1)
    E = N * deg
    return {
        "x": _w((lambda *s: torch.randn(*s, dtype=torch.bfloat16) * 0.8)(N, D)),
        "e_attr": _w((lambda *s: torch.randn(*s, dtype=torch.bfloat16) * 0.8)(E, De)),
        "src": _w((lambda lo, hi, *s: torch.randint(lo, hi, s))(0, N, E).to(torch.int64)),
        "dst": _w((lambda lo, hi, *s: torch.randint(lo, hi, s))(0, N, E).to(torch.int64)),
        "w_a": _w((lambda *s: torch.randn(*s, dtype=torch.bfloat16) * 0.8)(D, D)),
        "w_b": _w((lambda *s: torch.randn(*s, dtype=torch.bfloat16) * 0.8)(D, D)),
        "w_c": _w((lambda *s: torch.randn(*s, dtype=torch.bfloat16) * 0.8)(De, D)),
        "w_u": _w((lambda *s: torch.randn(*s, dtype=torch.bfloat16) * 0.05)(D, D)),
        "w_v": _w((lambda *s: torch.randn(*s, dtype=torch.bfloat16) * 0.05)(D, D)),
    }

def reference(x, e_attr, src, dst, w_a, w_b, w_c, w_u, w_v):
    N, D = x.shape
    hv = x @ w_v
    g = x[dst] @ w_a + x[src] @ w_b + e_attr @ w_c
    eta = _sigmoid(g)
    denom = _segment_sum(eta, dst, N) + 1e-6
    eta_n = eta / denom[dst]
    agg = _segment_sum(eta_n * hv[src], dst, N)
    z = x @ w_u + agg
    relu_z = torch.where(z > 0, z, 0 * z)
    return x + relu_z
```

```python
class Asm:
    def __init__(self):
        self.lines=[]
        self.uid=0
    def __call__(self,s=''):
        for ln in s.split('\n'):
            self.lines.append(ln)
    def label(self,name): self.lines.append(name+':')
    def newlabel(self,p='L'):
        self.uid+=1; return f'{p}_{self.uid}'
    def text(self): return '\n'.join(self.lines)+'\n'

def vr(a,n=1):
    return f'v{a}' if n==1 else f'v[{a}:{a+n-1}]'
def ar(a,n=1):
    return f'a{a}' if n==1 else f'a[{a}:{a+n-1}]'
def sr(a,n=1):
    return f's{a}' if n==1 else f's[{a}:{a+n-1}]'

def kernel_header(a,name):
    a(f'.text\n.globl {name}\n.p2align 8\n.type {name},@function\n{name}:')
def kernel_desc(a,name,vgpr,sgpr=102,accum=None,extra=''):
    if accum is None: accum=(vgpr+3)//4*4
    a(f'''.section .rodata,"a"
.p2align 6
.amdhsa_kernel {name}
  .amdhsa_next_free_vgpr {vgpr}
  .amdhsa_next_free_sgpr {sgpr}
  .amdhsa_accum_offset {accum}
  .amdhsa_group_segment_fixed_size 0
  .amdhsa_kernarg_size 96
  .amdhsa_user_sgpr_count 2
  .amdhsa_user_sgpr_kernarg_segment_ptr 1
  .amdhsa_system_sgpr_workgroup_id_x 1
  .amdhsa_float_denorm_mode_32 3
{extra}.end_amdhsa_kernel
.text''')
def srd(a,s,base,nbytes):
    a(f's_mov_b32 s{s}, s{base}\ns_and_b32 s{s+1}, s{base+1}, 0xffff\ns_mov_b32 s{s+2}, {nbytes}\ns_mov_b32 s{s+3}, 0x20000')
```

```python
import sys, argparse
from asmlib import *

NB=250; NCH=250; CH=2560; BN=40
KN='gather_scatter__edge_featured_mpnn_gatedgcn__graph_kernel'
K1N='bin_kernel'
CELLS_BYTES=NB*NCH*128
PAD=0x40000000
NEGLOG2E=0xBFB8AA3B

def gen_k1(a,opt):
    name=K1N
    kernel_header(a,name)
    CNT=40960
    a(f's_cmp_ge_u32 s2, {NCH}\ns_cbranch_scc1 K1_end')
    a('s_load_dwordx4 s[4:7], s[0:1], 16')
    a('s_load_dwordx2 s[8:9], s[0:1], 88')
    a('v_lshlrev_b32 v1, 4, v0')
    a('v_mov_b32 v4, -1\nv_mov_b32 v5, -1\nv_mov_b32 v6, -1\nv_mov_b32 v7, -1')
    for j in range(4): a(f'ds_write_b128 v1, v[4:7] offset:{j*10240}')
    a('v_mov_b32 v8, 0\nv_mov_b32 v9, 0\nv_mov_b32 v10, 0\nv_mov_b32 v11, 0')
    a('v_and_b32 v2, 0x3ff, v1')
    a(f'ds_write_b128 v2, v[8:11] offset:{CNT}')
    a(f's_mul_i32 s20, s2, {CH*4}')
    a('v_add_u32 v3, s20, v1')
    a('s_waitcnt lgkmcnt(0)')
    srd(a,12,4,640000*4)
    srd(a,16,6,640000*4)
    srd(a,24,8,CELLS_BYTES)
    a('buffer_load_dwordx4 v[12:15], v3, s[16:19], 0 offen')
    a('buffer_load_dwordx4 v[16:19], v3, s[12:15], 0 offen')
    a('s_barrier')
    a('s_mov_b32 s21, 52429\ns_mov_b32 s22, -40')
    a('v_lshlrev_b32 v2, 2, v0')
    a('v_mov_b32 v20, 1')
    a('s_waitcnt vmcnt(1)')
    for j in range(4):
        a(f'v_mul_u32_u24 v{24+j}, s21, v{12+j}\nv_lshrrev_b32 v{24+j}, 21, v{24+j}')
        a(f'v_lshlrev_b32 v{28+j}, 2, v{24+j}')
        a(f'ds_add_rtn_u32 v{32+j}, v{28+j}, v20 offset:{CNT}')
        a(f'v_mad_i32_i24 v{12+j}, v{24+j}, s22, v{12+j}')
    a('s_waitcnt vmcnt(0)')
    for j in range(4):
        a(f'v_add_u32 v21, {j}, v2\nv_lshl_or_b32 v21, v{16+j}, 12, v21\nv_lshl_or_b32 v{16+j}, v{12+j}, 26, v21')
    a('s_waitcnt lgkmcnt(0)')
    a(f'v_mov_b32 v22, {CNT+1020}')
    for j in range(4):
        a(f'v_lshlrev_b32 v{24+j}, 7, v{24+j}\nv_lshl_add_u32 v{24+j}, v{32+j}, 2, v{24+j}')
        a(f'v_cmp_gt_u32 vcc, 32, v{32+j}\ns_nop 1\nv_cndmask_b32 v{24+j}, v22, v{24+j}, vcc')
        a(f'ds_write_b32 v{24+j}, v{16+j}')
    a('s_waitcnt lgkmcnt(0)\ns_barrier')
    a('v_lshrrev_b32 v2, 3, v0')
    a('v_and_b32 v3, 7, v0')
    a('v_lshlrev_b32 v4, 2, v2')
    for j in range(4):
        a(f'ds_read_b128 v[{12+4*j}:{15+4*j}], v1 offset:{j*10240}')
        a(f'ds_read_b32 v{28+j}, v4 offset:{CNT+j*320}')
    a('s_mov_b32 s23, 32000')
    a('v_mul_lo_u32 v5, v2, s23\nv_lshl_add_u32 v5, v3, 4, v5')
    a('s_lshl_b32 s20, s2, 7')
    a('v_cmp_eq_u32 s[30:31], 7, v3')
    a('v_mov_b32 v6, -2')
    for j in range(4):
        a(f's_waitcnt lgkmcnt({6-2*j})')
        a(f'v_cmp_lt_u32 vcc, 32, v{28+j}\ns_nop 1\ns_and_b64 vcc, vcc, s[30:31]\ns_nop 1\nv_cndmask_b32 v{15+4*j}, v{15+4*j}, v6, vcc')
        a(f's_add_u32 s21, s20, {j*80*32000}')
        a(f'buffer_store_dwordx4 v[{12+4*j}:{15+4*j}], v5, s[24:27], s21 offen {opt.k1store}')
    a('K1_end:\ns_endpgm')
    kernel_desc(a,name,40,40)

L_CNT=0; L_UNIT=256; L_XL=2048; L_EL=L_XL+41*512; L_ACC=L_EL+41*512; L_AU=L_ACC+41*512
L_XBUF=86016; LDS2=L_XBUF+8*8192
assert L_AU+41*512<=L_XBUF and L_AU+511<65536
DUMMY=40*512
ST_WA=0; ST_WB=8192; ST_WV=16384; ST_WU=24576; ST_WC=32768
I_T2=60; I_FLAG=61

class R: pass
def alloc_regs():
    r=R(); n=[3]
    def al(k,align=1):
        while n[0]%align: n[0]+=1
        x=n[0]; n[0]+=k; return x
    r.swzA=al(1); r.swzB=al(1); r.lx=al(1)
    r.xr=al(4); r.le=al(1); r.eh=al(1); r.n4=al(1); r.puo=al(1); r.pur=al(1)
    r.UO=al(1); r.UR=al(1); r.UA=al(1); r.LE=al(1)
    r.ACCA=al(2); r.PADR=al(2); r.den=al(1); r.num=al(1); r.t0=al(1); r.t1=al(1)
    r.LX=al(4,4); r.XE=al(4,4)
    r.SEL=al(4,4); r.BS=al(6,4)
    r.Wb=al(32,4); r.Wv=al(32,4); r.Wc=al(8,4)
    r.EL=al(8,4); r.EC=al(4,4); r.X=al(32,4)
    r.G0=al(16,4); r.G1=al(16,4); r.H=al(16,4)
    r.total=n[0]
    return r

def mf(d,a_,b,c): return f'v_mfma_f32_32x32x16_bf16 v[{d}:{d+15}], v[{a_}:{a_+3}], v[{b}:{b+3}], '+('0' if c is None else f'v[{c}:{c+15}]')

def gen_k2(a,opt):
    r=alloc_regs(); name=KN
    kernel_header(a,name)
    sX,sE,sWS,sOUT,sT,sT2=28,32,36,40,44,48
    sW=52; sXB=53; sN=54; sMODE=55; sBATCH=56; sPADC=57; sNODE0=58; sT2v=59
    a(f's_cmp_ge_u32 s2, {NB}\ns_cbranch_scc1 K2_end')
    a('s_load_dwordx16 s[4:19], s[0:1], 0\ns_load_dwordx8 s[20:27], s[0:1], 64')
    if opt.stamp: a('s_memrealtime s[70:71]')
    a('v_lshrrev_b32 v1, 6, v0\nv_and_b32 v2, 63, v0\ns_nop 0')
    a(f'v_readfirstlane_b32 s{sW}, v1')
    a(f's_mul_i32 s{sNODE0}, s2, {BN}')
    T=r.G0
    a(f'v_lshrrev_b32 v{T}, 3, v2')
    a(f'v_and_b32 v{T+1}, 7, v2')
    a(f'v_lshrrev_b32 v{T+2}, 1, v{T}\nv_xor_b32 v{T+2}, v{T+2}, v{T+1}\nv_lshlrev_b32 v{r.swzA}, 4, v{T+2}')
    a(f'v_xor_b32 v{r.swzB}, 64, v{r.swzA}')
    a(f'v_and_b32 v{T+2}, 3, v{T}\nv_lshlrev_b32 v{r.lx}, 4, v{T+2}')
    a(f'v_and_b32 v{T+3}, 31, v2')
    a(f'v_lshrrev_b32 v{T+4}, 5, v2')
    a(f'v_lshlrev_b32 v{r.n4}, 2, v{T+3}')
    a(f'v_lshlrev_b32 v{r.eh}, 4, v{T+4}')
    a(f'v_and_b32 v{T+5}, 3, v{T+3}\nv_lshlrev_b32 v{T+5}, 2, v{T+5}\nv_lshrrev_b32 v{T+6}, 3, v{T+3}\nv_add_u32 v{T+5}, v{T+5}, v{T+6}\nv_lshlrev_b32 v{r.le}, 2, v{T+5}')
    a(f's_lshl_b32 s{sXB}, s{sW}, 13\ns_add_u32 s{sXB}, s{sXB}, {L_XBUF}')
    a(f'v_lshrrev_b32 v{T+5}, 1, v{T+3}\nv_and_b32 v{T+5}, 7, v{T+5}\nv_lshlrev_b32 v{T+6}, 2, v{T+4}')
    for kk in range(4):
        a(f'v_add_u32 v{T+7}, {kk}, v{T+6}\nv_xor_b32 v{T+7}, v{T+7}, v{T+5}\nv_lshlrev_b32 v{T+7}, 4, v{T+7}\nv_lshl_add_u32 v{T+7}, v{T+3}, 7, v{T+7}\nv_add_u32 v{r.xr+kk}, s{sXB}, v{T+7}')
    a(f'v_bfe_u32 v{T+5}, v{T+3}, 2, 1')
    a(f'v_cmp_eq_u32 vcc, v{T+4}, v{T+5}\nv_mov_b32 v{T+6}, 0x3f803f80\nv_mov_b32 v{r.SEL+1}, 0\nv_cndmask_b32 v{r.SEL}, 0, v{T+6}, vcc')
    a(f'v_mov_b32 v{r.SEL+2}, 0\nv_mov_b32 v{r.SEL+3}, 0')
    a(f'v_mov_b32 v{r.BS+1}, 0x7149\nv_mov_b32 v{r.BS+3}, 0x7149\nv_mov_b32 v{r.BS+4}, 0\nv_mov_b32 v{r.BS+5}, 0')
    a(f's_mov_b32 s{sPADC}, 0x3f80')
    a('s_waitcnt lgkmcnt(0)')
    srd(a,sX,4,1280000); srd(a,sE,6,640000*32); srd(a,sWS,26,CELLS_BYTES); srd(a,sOUT,22,1280000)
    Wt=r.X
    a(f'v_lshlrev_b32 v1, 4, v0')
    srd(a,sT,12,8192);  a(f'buffer_load_dwordx4 v[{Wt}:{Wt+3}], v1, s[{sT}:{sT+3}], 0 offen')
    srd(a,sT2,14,8192); a(f'buffer_load_dwordx4 v[{Wt+4}:{Wt+7}], v1, s[{sT2}:{sT2+3}], 0 offen')
    srd(a,64,16,2048);  a(f'buffer_load_dwordx4 v[{Wt+8}:{Wt+11}], v1, s[64:67], 0 offen')
    srd(a,sT,20,8192)
    a(f's_lshl_b32 s60, s{sW}, 10\ns_add_u32 m0, s60, {L_XBUF+ST_WV}\ns_nop 0')
    a(f'buffer_load_dwordx4 v1, s[{sT}:{sT+3}], 0 offen lds')
    srd(a,sT2,18,8192)
    a(f's_add_u32 m0, s60, {L_XBUF+ST_WU}\ns_nop 0')
    a(f'buffer_load_dwordx4 v1, s[{sT2}:{sT2+3}], 0 offen lds')
    XJ=r.X+16
    a(f's_and_b32 s60, s{sW}, 1\ns_lshl_b32 s60, s60, 5\ns_add_u32 s60, s60, s{sNODE0}')
    a(f'v_add_u32 v{T+5}, s60, v{T+3}\nv_lshlrev_b32 v{T+5}, 7, v{T+5}\nv_lshl_add_u32 v{T+5}, v{T+4}, 6, v{T+5}')
    for kk in range(4): a(f'buffer_load_dwordx4 v[{XJ+4*kk}:{XJ+4*kk+3}], v{T+5}, s[{sX}:{sX+3}], 0 offen offset:{16*kk}')
    RC=r.G0
    a(f'v_lshrrev_b32 v{r.t0}, 2, v0\nv_and_b32 v{r.t1}, 3, v0\nv_lshlrev_b32 v{r.t1}, 4, v{r.t1}\nv_lshl_add_u32 v{r.t1}, v{r.t0}, 7, v{r.t1}')
    a(f's_mul_i32 s60, s2, 32000\ns_add_u32 s61, s60, {128*128}')
    a(f'v_mov_b32 v{r.H}, v{T+3}\nv_mov_b32 v{r.H+1}, v{T+4}')
    a(f'buffer_load_dwordx4 v[{RC}:{RC+3}], v{r.t1}, s[{sWS}:{sWS+3}], s60 offen')
    a(f'buffer_load_dwordx4 v[{RC+8}:{RC+11}], v{r.t1}, s[{sWS}:{sWS+3}], s60 offen offset:64')
    for k in (4,5,6,7,12,13,14,15): a(f'v_mov_b32 v{RC+k}, -1')
    a(f'v_cmp_gt_u32 vcc, 488, v0\ns_and_saveexec_b64 s[62:63], vcc')
    a(f'buffer_load_dwordx4 v[{RC+4}:{RC+7}], v{r.t1}, s[{sWS}:{sWS+3}], s61 offen')
    a(f'buffer_load_dwordx4 v[{RC+12}:{RC+15}], v{r.t1}, s[{sWS}:{sWS+3}], s61 offen offset:64')
    a('s_mov_b64 exec, s[62:63]')
    a(f's_lshl_b32 s60, s{sNODE0}, 7')
    a(f'buffer_load_dwordx4 v[{r.XE}:{r.XE+3}], v1, s[{sX}:{sX+3}], s60 offen')
    def init_lists():
        Z=r.LX
        a(f'v_lshlrev_b32 v1, 4, v0')
        for k in range(4): a(f'v_mov_b32 v{Z+k}, {hex(PAD)}')
        for k in range(5): a(f'ds_write_b128 v1, v[{Z}:{Z+3}] offset:{L_XL+k*8192}')
        lab=a.newlabel('Li')
        a(f's_cmp_lg_u32 s{sW}, 0\ns_cbranch_scc1 {lab}')
        a(f'ds_write_b128 v1, v[{Z}:{Z+3}] offset:{L_XL+5*8192}')
        a(f'{lab}:')
        lab=a.newlabel('Li')
        a(f's_cmp_gt_u32 s{sW}, 1\ns_cbranch_scc1 {lab}')
        a(f'v_mov_b32 v{Z}, {DUMMY}\nv_cmp_gt_u32 vcc, 16, v0\ns_nop 1\nv_cndmask_b32 v{Z}, v{Z}, 0, vcc' .replace(f'v_cndmask_b32 v{Z}, v{Z}, 0, vcc',f'v_cndmask_b32_e64 v{Z}, v{Z}, 0, vcc'))
        a(f'v_mov_b32 v{Z+1}, v{Z}\nv_mov_b32 v{Z+2}, v{Z}\nv_mov_b32 v{Z+3}, v{Z}')
        a(f'ds_write_b128 v1, v[{Z}:{Z+3}] offset:{L_CNT}')
        a(f'{lab}:')
    init_lists()
    Z=r.LX
    for k in range(4): a(f'v_mov_b32 v{Z+k}, 0')
    a(f'v_add_u32 v{r.t0}, {L_ACC}, v1')
    for k in range(5): a(f'ds_write_b128 v{r.t0}, v[{Z}:{Z+3}] offset:{k*8192}')
    lab=a.newlabel('Li')
    a(f's_cmp_lg_u32 s{sW}, 0\ns_cbranch_scc1 {lab}')
    a(f'ds_write_b128 v{r.t0}, v[{Z}:{Z+3}] offset:{5*8192}')
    a(f'{lab}:')
    a(f's_mov_b32 s60, {hex(NEGLOG2E)}')
    a(f'v_add_u32 v{r.t0}, {L_XBUF}, v1')
    for i,(off,cnt) in enumerate(((ST_WA,13),(ST_WB,12),(ST_WC,11))):
        a(f's_waitcnt vmcnt({cnt})')
        b=Wt+4*i
        for k in range(4):
            a(f'v_lshlrev_b32 v{r.UO}, 16, v{b+k}\nv_and_b32 v{r.UR}, 0xffff0000, v{b+k}\nv_mul_f32 v{r.UO}, s60, v{r.UO}\nv_mul_f32 v{r.UR}, s60, v{r.UR}\nv_cvt_pk_bf16_f32 v{b+k}, v{r.UO}, v{r.UR}')
        a(f'ds_write_b128 v{r.t0}, v[{b}:{b+3}] offset:{off}')
    a('s_waitcnt vmcnt(9) lgkmcnt(0)\ns_barrier')
    if opt.stamp: a('s_memrealtime s[72:73]')
    vW=r.t0; vWc=r.t1
    a(f'v_and_b32 v2, 63, v0')
    a(f'v_bfe_u32 v{r.UO}, v2, 2, 2')
    a(f'v_and_b32 v{r.UR}, 3, v2\nv_lshlrev_b32 v{r.UR}, 3, v{r.UR}')
    a(f'v_bfe_u32 v{r.UA}, v2, 4, 1\nv_lshl_add_u32 v{r.UR}, v{r.UA}, 5, v{r.UR}')
    a(f'v_lshrrev_b32 v{r.UA}, 5, v2')
    a(f'v_lshl_add_u32 v{vW}, v{r.UA}, 5, v{r.UO}\nv_lshl_add_u32 v{vW}, v{vW}, 7, v{r.UR}\nv_add_u32 v{vW}, {L_XBUF}, v{vW}')
    a(f'v_lshl_add_u32 v{vWc}, v{r.UA}, 3, v{r.UO}\nv_lshl_add_u32 v{vWc}, v{vWc}, 7, v{r.UR}\nv_add_u32 v{vWc}, {L_XBUF}, v{vWc}')
    def trread(dst,base,off):
        a(f'ds_read_b64_tr_b16 v[{dst}:{dst+1}], v{base} offset:{off}')
        a(f'ds_read_b64_tr_b16 v[{dst+2}:{dst+3}], v{base} offset:{off+512}')
    WJ=r.X
    a(f's_lshr_b32 s60, s{sW}, 2\ns_mul_i32 s60, s60, {ST_WU-ST_WA}\ns_bfe_u32 s61, s{sW}, 0x10001\ns_lshl_b32 s61, s61, 6\ns_add_u32 s60, s60, s61')
    a(f'v_add_u32 v{r.LE}, s60, v{vW}')
    for kk in range(4): trread(WJ+4*kk,r.LE,ST_WA+kk*1024)
    for tp in range(2):
        for kk in range(4): trread(r.Wb+16*tp+4*kk,vW,ST_WB+kk*1024+tp*64)
    a('s_waitcnt lgkmcnt(15)')
    a('s_waitcnt lgkmcnt(15) vmcnt(5)')
    J=r.G1
    for kk in range(4): a(mf(J,XJ+4*kk,WJ+4*kk,None if kk==0 else J))
    for tp in range(2):
        for kk in range(4): trread(r.Wv+16*tp+4*kk,vW,ST_WV+kk*1024+tp*64)
        a('s_waitcnt lgkmcnt(8)')
    for tp in range(2): trread(r.Wc+4*tp,vWc,ST_WC+tp*64)
    a(f's_and_b32 s60, s{sW}, 1\ns_lshl_b32 s60, s60, 14')
    a(f's_lshr_b32 s61, s{sW}, 2\ns_lshl_b32 s61, s61, 8\ns_add_u32 s60, s60, s61')
    a(f's_bfe_u32 s61, s{sW}, 0x10001\ns_lshl_b32 s61, s61, 7\ns_add_u32 s60, s60, s61\ns_add_u32 s60, s60, {L_AU}')
    a(f'v_lshlrev_b32 v{r.LE}, 11, v{r.H+1}\nv_add_u32 v{r.LE}, v{r.LE}, v{r.n4}\nv_add_u32 v{r.LE}, s60, v{r.LE}')
    a('s_nop 4')
    labU=a.newlabel('Lju'); labW=a.newlabel('Ljw'); labW1=a.newlabel('Ljw1'); labD=a.newlabel('Ljd')
    a(f's_cmp_ge_u32 s{sW}, 4\ns_cbranch_scc1 {labW}')
    for k in range(16):
        a(f'v_cvt_pk_bf16_f32 v{r.UO}, v{J+k}, v{J+k}\nv_lshlrev_b32 v{r.UO}, 16, v{r.UO}\nv_sub_f32 v{r.UO}, v{J+k}, v{r.UO}\nv_cvt_pk_bf16_f32 v{J+k}, v{J+k}, v{r.UO}')
    a(f'{labW}:')
    for k in range(4): a(f'ds_write_b32 v{r.LE}, v{J+k} offset:{(8*(k>>2)+(k&3))*512}')
    a(f's_bitcmp1_b32 s{sW}, 0\ns_cbranch_scc1 {labD}')
    for k in range(4,16): a(f'ds_write_b32 v{r.LE}, v{J+k} offset:{(8*(k>>2)+(k&3))*512}')
    a(f'{labD}:')
    if opt.stamp: a('s_memrealtime s[74:75]')
    DL=r.X; RK=r.X+16
    CB=[r.UO,r.UR]
    a(f'v_lshrrev_b32 v{r.UA}, 2, v0\ns_mov_b32 s60, {CH*32}\nv_mul_lo_u32 v{CB[0]}, v{r.UA}, s60\nv_add_u32 v{CB[1]}, {128*CH*32}, v{CB[0]}')
    a(f'v_mov_b32 v{r.LX}, 1')
    a('s_waitcnt vmcnt(1)')
    if opt.stamp: a('s_memrealtime s[76:77]')
    a(f'v_cmp_eq_u32 vcc, -2, v{RC+11}\nv_cmp_eq_u32 s[62:63], -2, v{RC+15}\ns_nop 1\ns_or_b64 vcc, vcc, s[62:63]')
    lab=a.newlabel('Lov')
    a(f's_cbranch_vccz {lab}')
    a(f'v_mov_b32 v{r.LE}, {L_CNT+4*I_FLAG}\nds_write_b32 v{r.LE}, v{r.LX}')
    a(f'{lab}:')
    def ins_atomic(k):
        a(f'v_lshrrev_b32 v{DL+k}, 26, v{RC+k}')
        a(f'v_cmpx_gt_u32 vcc, 40, v{DL+k}')
        a(f'v_lshlrev_b32 v{r.LE}, 2, v{DL+k}')
        a(f'ds_add_rtn_u32 v{RK+k}, v{r.LE}, v{r.LX} offset:{L_CNT}')
        a('s_mov_b64 exec, -1')
    def ins_write(k,cb):
        a(f'v_cmpx_gt_u32 vcc, 40, v{DL+k}')
        a(f'v_min_u32 v{RK+k}, 127, v{RK+k}')
        a(f'v_lshlrev_b32 v{DL+k}, 9, v{DL+k}\nv_lshl_add_u32 v{DL+k}, v{RK+k}, 2, v{DL+k}\nv_add_u32 v{DL+k}, {L_XL}, v{DL+k}')
        a(f'v_lshrrev_b32 v{RK+k}, 5, v{RC+k}\nv_and_b32 v{RK+k}, 0x1fff80, v{RK+k}')
        a(f'v_and_b32 v{RC+k}, 0xfff, v{RC+k}\nv_lshl_add_u32 v{RC+k}, v{RC+k}, 5, v{cb}')
        a(f'ds_write2st64_b32 v{DL+k}, v{RK+k}, v{RC+k} offset0:0 offset1:82')
        a('s_mov_b64 exec, -1')
    for k in range(8): ins_atomic(k)
    skips=[]
    for pj in range(2):
        lab=a.newlabel('Lsp'); skips.append(lab)
        k0=8+4*pj
        a(f'v_cmp_ne_u32 vcc, -1, v{RC+k0}\ns_nop 1\ns_mov_b64 s[{64+2*pj}:{65+2*pj}], vcc\ns_cbranch_vccz {lab}')
        for k in range(k0,k0+4): ins_atomic(k)
        a(f'{lab}:')
    a('s_waitcnt lgkmcnt(0)')
    for k in range(8): ins_write(k,CB[k//4])
    for pj in range(2):
        lab=a.newlabel('Lsp')
        k0=8+4*pj
        a(f's_cmp_eq_u64 s[{64+2*pj}:{65+2*pj}], 0\ns_cbranch_scc1 {lab}')
        for k in range(k0,k0+4): ins_write(k,CB[pj])
        a(f'{lab}:')
    a(f's_mov_b32 s{sMODE}, 0\ns_mov_b32 s{sBATCH}, 0')
    a('L_build:')
    a('s_waitcnt lgkmcnt(0)\ns_barrier')
    if opt.stamp: a('s_memrealtime s[78:79]')
    lab=a.newlabel('Lub')
    a(f's_cmp_lg_u32 s{sW}, 0\ns_cbranch_scc1 {lab}')
    c,nu,ex=r.UO,r.UR,r.UA
    a(f'v_lshlrev_b32 v{r.LE}, 2, v0\nds_read_b32 v{c}, v{r.LE} offset:{L_CNT}\ns_waitcnt lgkmcnt(0)')
    a(f'v_cmp_gt_u32 vcc, 40, v0\ns_nop 1\nv_cndmask_b32 v{c}, 0, v{c}, vcc')
    a(f'v_cmp_lt_u32 vcc, 128, v{c}')
    lab2=a.newlabel('Lub')
    a(f's_cbranch_vccz {lab2}')
    a(f'v_mov_b32 v{r.LE}, {L_CNT+4*I_FLAG}\nv_mov_b32 v{nu}, 1\nds_write_b32 v{r.LE}, v{nu}')
    a(f'{lab2}:')
    a(f'v_min_u32 v{c}, 128, v{c}\nv_add_u32 v{nu}, 15, v{c}\nv_lshrrev_b32 v{nu}, 4, v{nu}\nv_mov_b32 v{ex}, v{nu}\ns_nop 1')
    for sh in (1,2,4,8): a(f'v_add_u32_dpp v{ex}, v{ex}, v{ex} row_shr:{sh} row_mask:0xf bank_mask:0xf bound_ctrl:0\ns_nop 1')
    a(f'v_add_u32_dpp v{ex}, v{ex}, v{ex} row_bcast:15 row_mask:0xa bank_mask:0xf\ns_nop 1')
    a(f'v_add_u32_dpp v{ex}, v{ex}, v{ex} row_bcast:31 row_mask:0xc bank_mask:0xf\ns_nop 1')
    a(f'v_readlane_b32 s60, v{ex}, 63')
    a(f'v_sub_u32 v{ex}, v{ex}, v{nu}\nv_lshlrev_b32 v{ex}, 2, v{ex}')
    a(f'v_lshlrev_b32 v{c}, 9, v0')
    a(f'v_mov_b32 v{r.LE}, s60\nv_mov_b32 v{r.t0}, {L_CNT+4*I_T2}\nds_write_b32 v{r.t0}, v{r.LE}')
    for u in range(8):
        a(f'v_cmpx_lt_u32 vcc, {u}, v{nu}\nds_write_b32 v{ex}, v{c} offset:{L_UNIT+4*u}\nv_add_u32 v{c}, 64, v{c}')
    a('s_mov_b64 exec, -1\ns_waitcnt lgkmcnt(0)')
    a(f'{lab}:')
    a('s_barrier')
    a(f'v_mov_b32 v{r.t0}, {L_CNT+4*I_T2}\nds_read_b64 v[{r.LX}:{r.LX+1}], v{r.t0}\ns_waitcnt lgkmcnt(0)')
    a(f'v_readfirstlane_b32 s{sT2v}, v{r.LX}\nv_readfirstlane_b32 s60, v{r.LX+1}\ns_nop 3')
    a(f's_cmp_eq_u32 s60, 0\ns_cbranch_scc1 L_go')
    a(f's_cmp_lg_u32 s{sMODE}, 0\ns_cbranch_scc1 L_go')
    a(f's_mov_b32 s{sMODE}, 1\ns_mov_b32 s{sBATCH}, 0\ns_branch L_slowfill')
    a('L_go:')
    if opt.stamp: a('s_memrealtime s[80:81]')
    a(f's_add_u32 s60, s{sT2v}, 1\ns_lshr_b32 s60, s60, 1\ns_add_u32 s60, s60, 7\ns_sub_u32 s60, s60, s{sW}\ns_lshr_b32 s{sN}, s60, 3')
    a(f's_cmp_eq_u32 s{sN}, 0\ns_cbranch_scc1 L_maindone')
    gen_main(a,r,opt,dict(sX=sX,sE=sE,sXB=sXB,sN=sN,sPADC=sPADC,sW=sW))
    a('L_maindone:')
    a('s_waitcnt vmcnt(0) lgkmcnt(0)\ns_barrier')
    if opt.stamp: a('s_memrealtime s[84:85]')
    a(f's_cmp_eq_u32 s{sMODE}, 0\ns_cbranch_scc1 L_epi')
    a(f's_add_u32 s{sBATCH}, s{sBATCH}, 1\ns_cmp_ge_u32 s{sBATCH}, 5000\ns_cbranch_scc1 L_epi')
    a('L_slowfill:')
    init_lists()
    a('s_waitcnt lgkmcnt(0)\ns_barrier')
    lab=a.newlabel('Lsf')
    a(f's_cmp_gt_u32 s{sW}, 1\ns_cbranch_scc1 {lab}')
    srd(a,sT,8,640000*4); srd(a,sT2,10,640000*4)
    a(f's_lshl_b32 s60, s{sBATCH}, 7\nv_add_u32 v{r.UO}, s60, v0\nv_lshlrev_b32 v{r.UR}, 2, v{r.UO}')
    a(f'buffer_load_dword v{r.LX}, v{r.UR}, s[{sT}:{sT+3}], 0 offen\nbuffer_load_dword v{r.LX+1}, v{r.UR}, s[{sT2}:{sT2+3}], 0 offen')
    a(f'v_mov_b32 v{r.LX+2}, 1\ns_waitcnt vmcnt(0)')
    a(f'v_subrev_u32 v{r.LX+1}, s{sNODE0}, v{r.LX+1}')
    a(f'v_cmpx_gt_u32 vcc, 40, v{r.LX+1}')
    a(f'v_lshlrev_b32 v{r.LE}, 2, v{r.LX+1}\nds_add_rtn_u32 v{r.LX+3}, v{r.LE}, v{r.LX+2} offset:{L_CNT}\ns_waitcnt lgkmcnt(0)')
    a(f'v_lshlrev_b32 v{r.LE}, 9, v{r.LX+1}\nv_lshl_add_u32 v{r.LE}, v{r.LX+3}, 2, v{r.LE}\nv_add_u32 v{r.LE}, {L_XL}, v{r.LE}')
    a(f'v_lshlrev_b32 v{r.LX}, 7, v{r.LX}\nv_lshlrev_b32 v{r.UO}, 5, v{r.UO}')
    a(f'ds_write2st64_b32 v{r.LE}, v{r.LX}, v{r.UO} offset0:0 offset1:82\ns_mov_b64 exec, -1')
    a(f'{lab}:')
    a('s_branch L_build')
    a('L_epi:')
    if opt.dumplds:
        lab=a.newlabel('Ldump')
        a(f's_cmp_lg_u32 s2, {opt.stampwg}\ns_cbranch_scc1 {lab}')
        a('s_add_u32 s88, s26, 0x1000000\ns_addc_u32 s89, s27, 0\ns_and_b32 s89, s89, 0xffff\ns_mov_b32 s90, 0x100000\ns_mov_b32 s91, 0x20000')
        a('v_lshlrev_b32 v1, 4, v0')
        for k in range(11):
            a(f'v_add_u32 v2, {k*8192}, v1\nds_read_b128 v[{r.G0}:{r.G0+3}], v2\ns_waitcnt lgkmcnt(0)\nbuffer_store_dwordx4 v[{r.G0}:{r.G0+3}], v2, s[88:91], 0 offen\ns_waitcnt vmcnt(0)')
        a(f'{lab}:')
        a('s_barrier')
    a(f's_cmp_ge_u32 s{sW}, 5\ns_cbranch_scc1 K2_end')
    D_,N_,U_=r.G0,r.G0+8,r.G1
    a(f'v_lshrrev_b32 v1, 3, v0\nv_and_b32 v2, 7, v0\nv_lshlrev_b32 v2, 5, v2\nv_lshl_add_u32 v1, v1, 9, v2')
    a(f'ds_read_b128 v[{D_}:{D_+3}], v1 offset:{L_ACC}\nds_read_b128 v[{D_+4}:{D_+7}], v1 offset:{L_ACC+16}')
    a(f'ds_read_b128 v[{N_}:{N_+3}], v1 offset:{L_ACC+256}\nds_read_b128 v[{N_+4}:{N_+7}], v1 offset:{L_ACC+256+16}')
    a(f'ds_read_b128 v[{U_}:{U_+3}], v1 offset:{L_AU+256}\nds_read_b128 v[{U_+4}:{U_+7}], v1 offset:{L_AU+256+16}')
    a(f's_mov_b32 s60, 0x358637bd')
    a('s_waitcnt lgkmcnt(4)')
    for k in range(8): a(f'v_add_f32 v{D_+k}, s60, v{D_+k}')
    for k in range(8): a(f'v_rcp_f32 v{D_+k}, v{D_+k}')
    a('s_waitcnt lgkmcnt(0)')
    for k in range(8): a(f'v_fma_f32 v{U_+k}, v{N_+k}, v{D_+k}, v{U_+k}')
    for k in range(8):
        a(f'v_mul_f32 v{N_+k}, 0, v{U_+k}\nv_cmp_lt_f32 vcc, 0, v{U_+k}\ns_nop 1\nv_cndmask_b32 v{U_+k}, v{N_+k}, v{U_+k}, vcc')
    for k in range(4):
        a(f'v_lshlrev_b32 v{N_}, 16, v{r.XE+k}\nv_and_b32 v{N_+1}, 0xffff0000, v{r.XE+k}')
        a(f'v_add_f32 v{N_}, v{N_}, v{U_+2*k}\nv_add_f32 v{N_+1}, v{N_+1}, v{U_+2*k+1}\nv_cvt_pk_bf16_f32 v{D_+k}, v{N_}, v{N_+1}')
    a(f'v_lshlrev_b32 v1, 4, v0\ns_lshl_b32 s60, s{sNODE0}, 7')
    a(f'buffer_store_dwordx4 v[{D_}:{D_+3}], v1, s[{sOUT}:{sOUT+3}], s60 offen')
    if opt.stamp:
        a('s_memrealtime s[86:87]\ns_waitcnt lgkmcnt(0)')
        lab=a.newlabel('Lst')
        a(f's_cmp_lg_u32 s2, {opt.stampwg}\ns_cbranch_scc1 {lab}\ns_cmp_lg_u32 s{sW}, 0\ns_cbranch_scc1 {lab}')
        a('v_mov_b32 v1, 0')
        for i,s in enumerate((70,72,74,76,78,80,82,84,86)):
            a(f's_sub_u32 s60, s{s}, s70\nv_mov_b32 v2, s60\nglobal_store_dword v1, v2, s[24:25] offset:{4*i}')
        a(f'v_mov_b32 v2, s{sT2v}\nglobal_store_dword v1, v2, s[24:25] offset:40')
        a(f'{lab}:')
    a('K2_end:\ns_endpgm')
    kernel_desc(a,name,max(r.total,8),96)
    return r

def gen_main(a,r,opt,S):
    sX,sE,sXB,sN,sPADC,sW=S['sX'],S['sE'],S['sXB'],S['sN'],S['sPADC'],S['sW']
    sMASK=61
    prio=opt.prio
    def setprio(x):
        if prio: a(f's_setprio {x}')
    a(f's_lshl_b32 s60, s{sW}, 3\ns_add_u32 s60, s60, {L_UNIT}')
    a(f'v_bfe_u32 v{r.t0}, v0, 5, 1\nv_lshlrev_b32 v{r.t0}, 2, v{r.t0}\nv_add_u32 v{r.puo}, s60, v{r.t0}')
    a(f'v_bfe_u32 v{r.t0}, v0, 2, 1\nv_lshlrev_b32 v{r.t0}, 2, v{r.t0}\nv_add_u32 v{r.pur}, s60, v{r.t0}')
    a(f's_mov_b32 s{sMASK}, 0xfffffe00')
    def rdU(off): return [f'ds_read_b32 v{r.UO}, v{r.puo} offset:{off}', f'ds_read_b32 v{r.UR}, v{r.pur} offset:{off}']
    def rdL(): return [f'v_add_u32 v{r.t0}, v{r.UO}, v{r.lx}', f'v_add_u32 v{r.t1}, v{r.UR}, v{r.le}',
                       f'ds_read_b128 v[{r.LX}:{r.LX+3}], v{r.t0} offset:{L_XL}', f'ds_read_b32 v{r.LE}, v{r.t1} offset:{L_EL}']
    def issueD(p):
        L=[]
        for i in range(4):
            L+= [f'v_add_u32 v{r.LX+i}, v{r.LX+i}, v{r.swzA if i%2==0 else r.swzB}', f's_add_u32 m0, s{sXB}, {p*4096+i*1024}' , ]
            L+= [f's_nop 0'] if False else []
            L+= [f'buffer_load_dwordx4 v{r.LX+i}, s[{sX}:{sX+3}], 0 offen lds {opt.xaux}']
        L+= [f'v_lshrrev_b32 v{r.t0}, 30, v{r.LE}', f'v_add_u32 v{r.LE}, v{r.LE}, v{r.eh}', f'v_mul_u32_u24 v{r.PADR+p}, s{sPADC}, v{r.t0}',
             f'buffer_load_dwordx4 v[{r.EL+4*p}:{r.EL+4*p+3}], v{r.LE}, s[{sE}:{sE+3}], 0 offen {opt.eaux}']
        return L
    def fixD(L):
        out=[]; i=0
        while i<len(L):
            if L[i].startswith('v_add_u32') and i+2<len(L) and L[i+1].startswith('s_add_u32 m0'):
                out+= [L[i+1],L[i],L[i+2]]; i+=3
            else: out.append(L[i]); i+=1
        return out
    def rdUA(off): return [f'ds_read_b32 v{r.UA}, v{r.puo} offset:{off}']
    def accaddr(p): return [f'v_and_or_b32 v{r.ACCA+p}, v{r.UA}, s{sMASK}, v{r.n4}']
    def rdP(p): return [f'ds_read_b32 v{r.BS}, v{r.ACCA+p} offset:{L_AU}', f'ds_read_b32 v{r.BS+2}, v{r.ACCA+p} offset:{L_AU+128}']
    def rdX(p): return [f'ds_read_b128 v[{r.X+16*p+4*kk}:{r.X+16*p+4*kk+3}], v{r.xr+kk} offset:{p*4096}' for kk in range(4)]
    def cpE(p): return [f'v_mov_b32 v{r.EC+k}, v{r.EL+4*p+k}' for k in range(4)]
    def gm(G,f,p):
        L=[mf(G,r.SEL,r.BS+2*f,None), mf(G,r.EC,r.Wc+4*f,G)]
        L+=[mf(G,r.X+16*p+4*kk,r.Wb+16*f+4*kk,G) for kk in range(4)]
        return L
    def hm(f,p): return [mf(r.H,r.X+16*p+4*kk,r.Wv+16*f+4*kk,None if kk==0 else r.H) for kk in range(4)]
    E_=lambda L:[a(x) for x in L]
    E_(rdU(0)); a('s_waitcnt lgkmcnt(0)'); E_(rdL()); E_(rdU(64)); a('s_waitcnt lgkmcnt(0)')
    E_(fixD(issueD(0))); E_(rdL()); E_(rdU(128)); a('s_waitcnt lgkmcnt(0)')
    E_(fixD(issueD(1))); E_(rdL()); E_(rdU(192)); E_(rdUA(0)); a('s_waitcnt lgkmcnt(0)')
    E_(accaddr(0)); a(f'v_or_b32 v{r.ACCA+1}, {DUMMY}, v{r.n4}'); E_(rdP(0))
    a(f'v_mov_b32 v{r.SEL+1}, v{r.PADR}')
    a('s_waitcnt vmcnt(5)'); E_(rdX(0)); E_(cpE(0)); a('s_waitcnt lgkmcnt(0)')
    E_(fixD(issueD(0)))
    E_(gm(r.G0,0,0))
    for k in range(16): a(f'v_mov_b32 v{r.G1+k}, 0\nv_mov_b32 v{r.H+k}, 0')
    for k in range(16): a(f'v_exp_f32 v{r.G0+k}, v{r.G0+k}')
    if opt.stamp: a('s_memrealtime s[82:83]')
    def prun(Gadd,Gacc,pre,flush_p,f,first_adds=6):
        setprio(0)
        E_(pre)
        adds=[f'v_add_f32 v{Gadd+k}, 1.0, v{Gadd+k}' for k in range(16)]
        acc=[f'v_mov_b32 v{r.den}, v{Gacc}', f'v_mul_f32 v{r.num}, v{Gacc}, v{r.H}']
        for k in range(1,16): acc+= [f'v_add_f32 v{r.den}, v{r.den}, v{Gacc+k}', f'v_fma_f32 v{r.num}, v{Gacc+k}, v{r.H+k}, v{r.num}']
        E_(adds[:first_adds]); adds=adds[first_adds:]
        while adds or acc:
            for _ in range(3):
                if acc: a(acc.pop(0))
            if adds: a(adds.pop(0))
        a(f'ds_add_f32 v{r.ACCA+flush_p}, v{r.den} offset:{L_ACC+128*f}')
        a(f'ds_add_f32 v{r.ACCA+flush_p}, v{r.num} offset:{L_ACC+256+128*f}')
    def trun(Grcp,Gexp,gms,hms,head,fill_a,fill_b):
        setprio(1)
        E_(head)
        pos={0:0,3:1,6:2,9:3,12:4,14:5}
        fa=list(fill_a)
        for k in range(16):
            if k in pos:
                a(gms[pos[k]])
            a(f'v_rcp_f32 v{Grcp+k}, v{Grcp+k}')
            if k>=1:
                n=(len(fa)+ (15-k))//(16-k) if k<15 else len(fa)
                for _ in range(n):
                    if fa: a(fa.pop(0))
        fb=list(fill_b)
        assert len(fb)>=9, len(fb)
        E_(fb)
        hp={0:0,3:1,6:2,9:3}
        for k in range(16):
            if k in hp: a(hms[hp[k]])
            a(f'v_exp_f32 v{Gexp+k}, v{Gexp+k}')
    def iteration(p):
        q=1-p
        prun(r.G0,r.G1,rdUA(64),q,1)
        fa=['s_waitcnt lgkmcnt(2)']+accaddr(q)+rdP(q)+[f'v_mov_b32 v{r.SEL+1}, v{r.PADR+q}']
        fb=rdL()+rdU(256)+[f'v_add_u32 v{r.puo}, 64, v{r.puo}', f'v_add_u32 v{r.pur}, 64, v{r.pur}', 's_nop 0']
        trun(r.G0,r.G1,gm(r.G1,1,p),hm(0,p),[],fa,fb)
        prun(r.G1,r.G0,['s_waitcnt vmcnt(5)']+rdX(q)+cpE(q),p,0)
        D=fixD(issueD(q))
        trun(r.G1,r.G0,gm(r.G0,0,q),hm(1,p),['s_waitcnt lgkmcnt(2)'],D[:6],D[6:])
    a('L_loop:')
    iteration(0)
    a(f's_sub_u32 s{sN}, s{sN}, 1\ns_cmp_eq_u32 s{sN}, 0\ns_cbranch_scc1 L_drain0')
    iteration(1)
    a(f's_sub_u32 s{sN}, s{sN}, 1\ns_cmp_lg_u32 s{sN}, 0\ns_cbranch_scc1 L_loop')
    for p,lab in ((1,'L_drain1'),(0,'L_drain0')):
        a(f'{lab}:')
        setprio(0)
        a('s_nop 7')
        a(f'v_mov_b32 v{r.den}, v{r.G1}\nv_mul_f32 v{r.num}, v{r.G1}, v{r.H}')
        for k in range(1,16): a(f'v_add_f32 v{r.den}, v{r.den}, v{r.G1+k}\nv_fma_f32 v{r.num}, v{r.G1+k}, v{r.H+k}, v{r.num}')
        a(f'ds_add_f32 v{r.ACCA+p}, v{r.den} offset:{L_ACC+128}\nds_add_f32 v{r.ACCA+p}, v{r.num} offset:{L_ACC+256+128}')
        if p==1: a('s_branch L_maindone')

def main():
    ap=argparse.ArgumentParser()
    ap.add_argument('-o',default='gather_scatter__edge_featured_mpnn_gatedgcn__graph.s')
    ap.add_argument('--prio',type=int,default=1); ap.add_argument('--stamp',type=int,default=0); ap.add_argument('--stampwg',type=int,default=7)
    ap.add_argument('--dumplds',type=int,default=0); ap.add_argument('--xaux',default=''); ap.add_argument('--eaux',default=''); ap.add_argument('--k1store',default='')
    opt=ap.parse_args()
    a=Asm()
    hdr=open('gather_scatter__edge_featured_mpnn_gatedgcn__graph.s.ref').read().split('; Override')[0]
    a(hdr.rstrip())
    a(f'; @launch kernel={K1N} grid=({NCH},1,1) block=(640,1,1) lds=42240')
    a(f'; @launch kernel={KN} grid=({NB},1,1) block=(512,1,1) lds={LDS2}')
    a('.amdgcn_target "amdgcn-amd-amdhsa--gfx950"')
    gen_k1(a,opt)
    r=gen_k2(a,opt)
    open(opt.o,'w').write(a.text())
    print('K2 vgprs',r.total,'lines',len(a.lines),file=sys.stderr)
if __name__=='__main__': main()
```
